```python
import torch

def _softmax(x, axis=-1):
    return torch.softmax(x, dim=axis)

def _gelu(x):
    return torch.nn.functional.gelu(x, approximate='tanh')

def _silu(x):
    return torch.nn.functional.silu(x)

def _sigmoid(x):
    return torch.sigmoid(x)

def _layernorm(x, axis=-1, eps=1e-05):
    m = x.mean(dim=axis, keepdim=True)
    v = x.var(dim=axis, keepdim=True, unbiased=False)
    return (x - m) / torch.sqrt(v + eps)

def _scatter_add(tgt, idx, src, axis=0):
    return tgt.clone().index_add_(axis, idx, src)

def _segment_sum(src, seg, n):
    out = torch.zeros((n,) + src.shape[1:], dtype=src.dtype)
    return out.index_add_(0, seg, src)

def _pad(x, pw):
    flat = tuple((v for pair in reversed(pw) for v in pair))
    return torch.nn.functional.pad(x, flat)
kernel_name = 'adaLN_cond__gqa_block_cached__moe_arch_mod__prompt'

def setup_inputs():

    _w = lambda a: (lambda t: t.to(torch.bfloat16) if t.is_floating_point() else t)(torch.as_tensor(a))

    def _A_setup():
        B, Sq, D = (1, 2048, 576)
        Hq, Hkv, Sk, Dh = (32, 16, 2048, 128)
        assert Hq % Hkv == 0, (Hq, Hkv)
        return {'x': _w((lambda *s: torch.randn(*s, dtype=torch.bfloat16) * 0.05)(B, Sq, D)), 'k_cache': _w((lambda *s: torch.randn(*s, dtype=torch.bfloat16) * 3.2)(B, Hkv, Sk, Dh)), 'v_cache': _w((lambda *s: torch.randn(*s, dtype=torch.bfloat16) * 0.4)(B, Hkv, Sk, Dh)), 'wq': _w((lambda *s: torch.randn(*s, dtype=torch.bfloat16) * 3.2)(D, Hq * Dh) * D ** (-0.5)), 'wo': _w((lambda *s: torch.randn(*s, dtype=torch.bfloat16) * 0.4)(Hq * Dh, D) * (Hq * Dh) ** (-0.5))}
    _A_in = _A_setup()

    def _B_setup():
        B, S, D, F, C = (1, 2048, 576, 4608, 8)
        return {'x': _w((lambda *s: torch.randn(*s, dtype=torch.bfloat16) * 0.05)(B, S, D)), 'w_r': _w((lambda *s: torch.randn(*s, dtype=torch.bfloat16) * 0.05)(D)), 'w_gate': _w((lambda *s: torch.randn(*s, dtype=torch.bfloat16) * 0.05)(D, F)), 'w_up': _w((lambda *s: torch.randn(*s, dtype=torch.bfloat16) * 0.05)(D, F)), 'w_down': _w((lambda *s: torch.randn(*s, dtype=torch.bfloat16) * 0.05)(F, D))}
    _B_in = _B_setup()
    return {'A_x': _A_in['x'], 'A_k_cache': _A_in['k_cache'], 'A_v_cache': _A_in['v_cache'], 'A_wq': _A_in['wq'], 'A_wo': _A_in['wo'], 'B_x': _B_in['x'], 'B_w_r': _B_in['w_r'], 'B_w_gate': _B_in['w_gate'], 'B_w_up': _B_in['w_up'], 'B_w_down': _B_in['w_down'], 'c': _w((lambda *s: torch.randn(*s, dtype=torch.bfloat16) * 0.1)(1, 576) * 8.0), 'w_mod': _w((lambda *s: torch.randn(*s, dtype=torch.bfloat16) * 0.1)(576, 6 * 576) * 576 ** (-0.5) * 8.0)}

def reference(A_x, A_k_cache, A_v_cache, A_wq, A_wo, B_x, B_w_r, B_w_gate, B_w_up, B_w_down, c, w_mod):

    def _A_ref(x, k_cache, v_cache, wq, wo):
        B, Sq, D = x.shape
        Hq, Dh = (32, 128)
        Hkv = k_cache.shape[1]
        rep = Hq // Hkv
        q = (lambda x, *d: x.permute(*d))((x @ wq).reshape(B, Sq, Hq, Dh), 0, 2, 1, 3)
        k = (lambda x, n, axis: torch.repeat_interleave(x, n, dim=axis))(k_cache, rep, axis=1)
        v = (lambda x, n, axis: torch.repeat_interleave(x, n, dim=axis))(v_cache, rep, axis=1)
        scores = torch.einsum('bhqd,bhkd->bhqk', q, k) * Dh ** (-0.5)
        p = _softmax(scores, axis=-1)
        o = torch.einsum('bhqk,bhkd->bhqd', p, v)
        return (lambda x, *d: x.permute(*d))(o, 0, 2, 1, 3).reshape(B, Sq, Hq * Dh) @ wo

    def _B_ref(x, w_r, w_gate, w_up, w_down):
        B, S, D = x.shape
        C = 8
        r = x @ w_r
        idx = torch.argsort(-r, axis=-1)[:, :C]
        idx_e = (lambda x, n, axis: torch.repeat_interleave(x, n, dim=axis))(idx.reshape(B, C, 1), D, axis=2)
        x_sel = (lambda x, i, axis: torch.take_along_dim(x, i, dim=axis))(x, idx_e, axis=1)
        g = _silu(x_sel @ w_gate)
        u = x_sel @ w_up
        y = g * u @ w_down
        r_sel = _sigmoid((lambda x, i, axis: torch.take_along_dim(x, i, dim=axis))(r, idx, axis=1))
        y = y * r_sel.reshape(B, C, 1)
        b_off = (torch.arange(B) * S).reshape(B, 1)
        flat_idx = (idx + b_off).reshape(B * C)
        zero = (x * 0.0).reshape(B * S, D)
        upd = _scatter_add(zero, flat_idx, y.reshape(B * C, D), axis=0)
        return x + upd.reshape(B, S, D)
    x = A_x
    mod = (_silu(c) @ w_mod).reshape(c.shape[0], 6, 1, -1)
    sa, ca, ga, sb, cb, gb = (mod[:, 0].clone(), mod[:, 1].clone(), mod[:, 2].clone(), mod[:, 3].clone(), mod[:, 4].clone(), mod[:, 5].clone())
    h = _layernorm(x, axis=-1) * (1 + ca) + sa
    x = x + ga * _A_ref(h, A_k_cache, A_v_cache, A_wq, A_wo)
    h = _layernorm(x, axis=-1) * (1 + cb) + sb
    x = x + gb * _B_ref(h, B_w_r, B_w_gate, B_w_up, B_w_down)
    return x
```

```python
import re

TRANS = ('v_exp_f32', 'v_log_f32', 'v_rcp_f32', 'v_rsq_f32', 'v_sqrt_f32', 'v_sin_f32', 'v_cos_f32')


def expand(tok):
    tok = tok.strip()
    neg = tok.lstrip('-').replace('abs(', '').replace(')', '').replace('|', '')
    m = re.fullmatch(r'([vas])\[(\d+):(\d+)\]', neg)
    if m:
        return ['%s%d' % (m.group(1), i) for i in range(int(m.group(2)), int(m.group(3)) + 1)]
    m = re.fullmatch(r'([vas])(\d+)', neg)
    if m:
        return [neg]
    if neg in ('vcc', 'exec', 'm0', 'vcc_lo', 'vcc_hi', 'exec_lo', 'exec_hi'):
        return [neg.split('_')[0]]
    return []


class Ins:
    def __init__(self, text):
        self.text = text
        t = text.split(';')[0].strip()
        self.label = t.endswith(':')
        self.op = t.split()[0] if t and not self.label else ''
        rest = t[len(self.op):].strip() if self.op else ''
        ops = [o.strip() for o in rest.split(',')] if rest else []
        if ops:
            parts = ops[-1].split()
            self.mods = parts[1:]
            ops[-1] = parts[0] if parts else ''
        else:
            self.mods = []
        self.ops = ops
        self.kind = self._kind()
        self.w, self.r = self._rw()

    def _kind(self):
        op = self.op
        if not op or op.startswith('.'):
            return 'none'
        if op.startswith('v_mfma'):
            return 'mfma'
        if op.startswith('v_'):
            return 'valu'
        if op.startswith('ds_'):
            return 'ds'
        if op.startswith('buffer_') or op.startswith('global_'):
            return 'vmem'
        return 'salu'

    def _rw(self):
        op, ops, k = self.op, self.ops, self.kind
        E = expand
        w, r = [], []
        if k == 'mfma':
            w = E(ops[0]); self.A = E(ops[1]); self.B = E(ops[2]); self.C = E(ops[3])
            r = self.A + self.B + self.C
            self.passes = 8 if '32x32' in op else 4
        elif k == 'valu':
            if 'permlane' in op and 'swap' in op:
                w = E(ops[0]) + E(ops[1]); r = list(w)
            elif op.startswith(('v_add_co', 'v_sub_co', 'v_addc_co', 'v_subb_co', 'v_subrev_co')):
                w = E(ops[0]) + E(ops[1])
                for o in ops[2:]:
                    r += E(o)
            else:
                w = E(ops[0])
                for o in ops[1:]:
                    r += E(o)
                if op.startswith(('v_fmac', 'v_dot2c', 'v_writelane')) or '_dpp' in op:
                    r += w
                if op.startswith('v_cndmask') and len(ops) == 3:
                    r.append('vcc')
        elif k == 'ds':
            if op.startswith('ds_read') or op.startswith('ds_bpermute') or op.startswith('ds_swizzle'):
                w = E(ops[0])
                for o in ops[1:]:
                    r += E(o)
            else:
                for o in ops:
                    r += E(o)
        elif k == 'vmem':
            lds = 'lds' in self.mods or '_lds_' in op
            self.lds = lds
            if op in ('buffer_wbl2', 'buffer_inv'):
                pass
            elif 'load' in op and not lds:
                w = E(ops[0])
                for o in ops[1:]:
                    r += E(o)
            elif 'atomic' in op and 'sc0' in self.mods:
                w = E(ops[0])
                for o in ops:
                    r += E(o)
            else:
                for o in ops:
                    r += E(o)
                if lds:
                    r.append('m0')
            self.store_data = []
            if 'store' in op and ('x4' in op or 'x3' in op):
                self.store_data = E(ops[0]) if op.startswith('buffer') else E(ops[1])
        elif k == 'salu':
            if op.startswith(('s_cmp', 's_cbranch', 's_branch', 's_waitcnt', 's_nop', 's_barrier', 's_endpgm',
                              's_setprio', 's_setpc', 's_sleep')):
                for o in ops:
                    r += E(o)
            else:
                if ops:
                    w = E(ops[0])
                for o in ops[1:]:
                    r += E(o)
                if 'saveexec' in op:
                    w.append('exec')
        return w, r

    def states(self):
        if self.kind == 'none' or self.label:
            return 0
        if self.op == 's_nop':
            return int(self.ops[0], 0) + 1
        return 1


def check_hazards(lines, name=''):
    ins = [Ins(l) for l in lines]
    ins = [i for i in ins if i.kind != 'none' and not i.label]
    probs = []
    n = len(ins)
    for j in range(n):
        c = ins[j]
        dist = 0
        for i in range(j - 1, max(-1, j - 24), -1):
            p = ins[i]
            need = 0
            why = ''
            pw, cr, cw = set(p.w), set(c.r), set(c.w)
            if p.kind == 'valu':
                vw = {x for x in pw if x[0] in 'va' and x != 'vcc'}
                sw = {x for x in pw if x[0] == 's' or x == 'vcc'}
                if c.kind == 'mfma' and vw & cr:
                    need, why = 2, 'valu->mfma'
                if c.kind == 'valu':
                    if p.op.replace('_e32', '').replace('_e64', '') in TRANS and vw & cr and \
                            c.op.replace('_e32', '').replace('_e64', '') not in TRANS:
                        need, why = max(need, 1), 'trans->valu'
                    if ('permlane' in c.op or '_dpp' in c.op) and vw & cr:
                        need, why = max(need, 2), 'valu->permlane/dpp'
                    if c.op.startswith(('v_readlane', 'v_readfirstlane')) and vw & cr:
                        need, why = max(need, 1), 'valu->readlane'
                    if sw & cr:
                        if c.op.startswith(('v_readlane', 'v_writelane')):
                            need, why = max(need, 4), 'valu sgpr->lane select'
                        else:
                            need, why = max(need, 2), 'valu sgpr->valu'
                    if 'sdwa' in p.op and vw & (cr | cw):
                        need, why = max(need, 1), 'sdwa->valu'
                if c.kind == 'vmem' and sw & cr:
                    need, why = max(need, 5), 'valu sgpr->vmem'
                if 'exec' in pw and c.kind in ('mfma',):
                    need, why = max(need, 4), 'valu exec->mfma'
            if p.kind == 'mfma':
                big = p.passes == 8
                if c.kind == 'mfma':
                    if pw & set(c.A + c.B):
                        need, why = (12 if big else 8), 'mfma D->mfma AB'
                    if pw & set(c.C):
                        if not (p.w == c.C and p.passes == c.passes):
                            need, why = max(need, 10 if big else 6), 'mfma D->mfma C partial'
                elif c.kind in ('valu', 'ds', 'vmem'):
                    if pw & (cr | cw):
                        need, why = (12 if big else 8), 'mfma D->valu/mem'
                    if c.kind == 'valu' and set(p.C) & cw:
                        need, why = max(need, 7 if big else 3), 'mfma C WAR'
            if p.kind == 'salu' and 'm0' in pw and c.kind == 'vmem' and getattr(c, 'lds', False):
                need, why = 1, 'm0->ldsdma'
            if p.kind == 'vmem' and getattr(p, 'store_data', None) and set(p.store_data) & cw:
                need, why = (2 if c.kind == 'valu' else 1), 'wide store WAR'
            if need > dist:
                probs.append('%s: %s needs %d has %d: [%s] -> [%s]' % (name, why, need, dist, p.text.strip(), c.text.strip()))
            dist += p.states()
            if dist >= 20:
                break
    return probs


class Asm:
    def __init__(self):
        self.lines = []
        self.vm = []

    def __call__(self, s):
        for l in s.split('\n'):
            l = l.strip()
            if l:
                self.lines.append(l if l.endswith(':') else '    ' + l)

    def vmem(self, s, tag):
        self(s)
        self.vm.append(tag)

    def wait_vm_n(self, tag):
        last = max(i for i, t in enumerate(self.vm) if t == tag)
        n = len(self.vm) - 1 - last
        self.vm = self.vm[last + 1:]
        assert n <= 63
        return n

    def wait_vm(self, tag):
        if tag not in self.vm:
            return
        self('s_waitcnt vmcnt(%d)' % self.wait_vm_n(tag))

    def text(self):
        return '\n'.join(self.lines) + '\n'


def vr(b, n=1, k='v'):
    return '%s%d' % (k, b) if n == 1 else '%s[%d:%d]' % (k, b, b + n - 1)


def ar(b, n=1):
    return vr(b, n, 'a')


def sr(b, n=1):
    return vr(b, n, 's')
```

```python
import sys, math, struct
from asmlib import Asm, check_hazards, vr, ar, sr

NAME = 'adaLN_cond__gqa_block_cached__moe_arch_mod__prompt'

KA_X, KA_K, KA_V, KA_WQ, KA_WO = 0, 8, 16, 24, 32
KA_WR, KA_WG, KA_WU, KA_WD, KA_C, KA_WMOD = 48, 56, 64, 72, 80, 88
KA_OUT, KA_DBG, KA_WS = 96, 104, 112

WS_CS = 0
WS_G = 4608
WS_KEY = 16384
WS_SEL = 24576
WS_XHAT = 0x10000
WS_X2 = 0x250000
WS_H2 = 0x490000
WS_YP = 0x6D0000
WS_PART = 0xC00000
WS_END = WS_PART + 256 * 16 * 9216

LOG2E = 1.4426950408889634


def f32(x):
    return '0x%08x' % struct.unpack('<I', struct.pack('<f', x))[0]


def srd(a, d, base, size):
    a('s_mov_b32 s%d, s%d' % (d, base))
    a('s_and_b32 s%d, s%d, 0xffff' % (d + 1, base + 1))
    a('s_mov_b32 s%d, %s' % (d + 2, size if isinstance(size, str) else hex(size)))
    a('s_mov_b32 s%d, 0x00020000' % (d + 3))


def rnd(a, v, t=None):
    a('v_cvt_pk_bf16_f32 v%d, v%d, v%d' % (v, v, v))
    a('v_and_b32 v%d, 0xffff0000, v%d' % (v, v))


def rnd2(a, v0, v1, t):
    a('v_cvt_pk_bf16_f32 v%d, v%d, v%d' % (t, v0, v1))
    a('v_lshlrev_b32 v%d, 16, v%d' % (v0, t))
    a('v_and_b32 v%d, 0xffff0000, v%d' % (v1, t))


def unpack(a, lo, hi, src):
    a('v_lshlrev_b32 v%d, 16, v%d' % (lo, src))
    a('v_and_b32 v%d, 0xffff0000, v%d' % (hi, src))


def dpp_allreduce16(a, v, op='v_add_f32', rors=(8, 4, 2, 1)):
    for r in rors:
        a('s_nop 1')
        a('%s_dpp v%d, v%d, v%d row_ror:%d row_mask:0xf bank_mask:0xf' % (op, v, v, v, r))


def header(a, name):
    a('.globl %s' % name)
    a('.p2align 8')
    a('.type %s,@function' % name)
    a('%s:' % name)


def descriptor(name, vgpr, sgpr, accum):
    return '''.p2align 6
.amdhsa_kernel %s
  .amdhsa_next_free_vgpr %d
  .amdhsa_next_free_sgpr %d
  .amdhsa_accum_offset %d
  .amdhsa_group_segment_fixed_size 0
  .amdhsa_kernarg_size 120
  .amdhsa_user_sgpr_count 2
  .amdhsa_user_sgpr_kernarg_segment_ptr 1
  .amdhsa_system_sgpr_workgroup_id_x 1
.end_amdhsa_kernel
''' % (name, vgpr, sgpr, accum)


def gen_k1():
    a = Asm()
    header(a, 'prep_kernel')
    a('s_cmp_ge_u32 s2, 240')
    a('s_cbranch_scc1 K1_END')
    a('s_load_dwordx2 s[4:5], s[0:1], %d' % KA_X)
    a('s_load_dwordx4 s[8:11], s[0:1], %d' % KA_C)
    a('s_load_dwordx2 s[6:7], s[0:1], %d' % KA_WS)
    a('s_waitcnt lgkmcnt(0)')
    srd(a, 12, 4, 2359296)
    srd(a, 16, 8, 1152)
    srd(a, 20, 10, 576 * 6912)
    srd(a, 24, 6, WS_END)
    a('s_cmp_ge_u32 s2, 112')
    a('s_cbranch_scc1 K1_LN')
    a('s_and_b32 s28, s2, 7')
    a('s_lshr_b32 s29, s2, 4')
    a('s_lshl_b32 s29, s29, 3')
    a('s_add_u32 s28, s28, s29')
    a('s_cmp_ge_u32 s28, 54')
    a('s_cbranch_scc1 K1_END')
    a('s_lshr_b32 s29, s2, 3')
    a('s_and_b32 s29, s29, 1')
    a('s_lshl_b32 s28, s28, 1')
    a('s_add_u32 s28, s28, s29')
    a('v_and_b32 v1, 3, v0')
    a('v_lshrrev_b32 v2, 2, v0')
    a('v_mul_u32_u24 v3, 6912, v2')
    a('v_lshl_add_u32 v3, v1, 4, v3')
    a('s_lshl_b32 s30, s28, 6')
    a('v_lshlrev_b32 v4, 1, v2')
    for i in range(9):
        a('buffer_load_ushort v%d, v4, s[16:19], 0 offen offset:%d' % (8 + i, i * 128))
    for i in range(9):
        a('buffer_load_dwordx4 %s, v3, s[20:23], s30 offen' % vr(20 + 4 * i, 4))
        if i < 8:
            a('s_add_u32 s30, s30, %d' % (64 * 6912))
    a('s_waitcnt vmcnt(9)')
    for i in range(9):
        a('v_lshlrev_b32 v%d, 16, v%d' % (8 + i, 8 + i))
    for i in range(9):
        a('v_mul_f32 v%d, %s, v%d' % (60 + i, f32(-LOG2E), 8 + i))
    for i in range(9):
        a('v_exp_f32 v%d, v%d' % (60 + i, 60 + i))
    for i in range(9):
        a('v_add_f32 v%d, 1.0, v%d' % (60 + i, 60 + i))
    for i in range(9):
        a('v_rcp_f32 v%d, v%d' % (60 + i, 60 + i))
    for i in range(9):
        a('v_mul_f32 v%d, v%d, v%d' % (8 + i, 8 + i, 60 + i))
    for i in range(9):
        rnd(a, 8 + i)
    for j in range(8):
        a('v_mov_b32 v%d, 0' % (72 + j))
    for i in range(9):
        a('s_waitcnt vmcnt(%d)' % (8 - i))
        for j in range(4):
            unpack(a, 60, 61, 20 + 4 * i + j)
            a('v_fmac_f32 v%d, v60, v%d' % (72 + 2 * j, 8 + i))
            a('v_fmac_f32 v%d, v61, v%d' % (73 + 2 * j, 8 + i))
    for r in (4, 8):
        a('s_nop 1')
        for j in range(8):
            a('v_add_f32_dpp v%d, v%d, v%d row_ror:%d row_mask:0xf bank_mask:0xf' % (72 + j, 72 + j, 72 + j, r))
    a('v_lshrrev_b32 v5, 4, v0')
    a('v_lshlrev_b32 v5, 7, v5')
    a('v_lshl_add_u32 v5, v1, 5, v5')
    a('v_and_b32 v6, 15, v0')
    a('v_cmp_gt_u32 vcc, 4, v6')
    a('s_and_saveexec_b64 s[32:33], vcc')
    a('ds_write_b128 v5, v[72:75]')
    a('ds_write_b128 v5, v[76:79] offset:16')
    a('s_mov_b64 exec, s[32:33]')
    a('s_waitcnt lgkmcnt(0)')
    a('s_barrier')
    a('v_cmp_gt_u32 vcc, 32, v0')
    a('s_and_saveexec_b64 s[32:33], vcc')
    a('s_cbranch_execz K1_END')
    a('v_lshlrev_b32 v5, 2, v0')
    for i in range(16):
        a('ds_read_b32 v%d, v5 offset:%d' % (20 + i, i * 128))
    a('s_mul_i32 s29, s28, 3641')
    a('s_lshr_b32 s29, s29, 16')
    a('s_mul_i32 s30, s29, 18')
    a('s_sub_u32 s30, s28, s30')
    a('s_lshl_b32 s30, s30, 5')
    a('v_add_u32 v6, s30, v0')
    a('s_waitcnt lgkmcnt(0)')
    for st in (8, 4, 2, 1):
        for i in range(st):
            a('v_add_f32 v%d, v%d, v%d' % (20 + i, 20 + i, 20 + i + st))
    rnd(a, 20)
    a('v_add_f32 v21, 1.0, v20')
    rnd(a, 21)
    a('s_cmp_eq_u32 s29, 1')
    a('s_cselect_b32 s31, 1, 0')
    a('s_cmp_eq_u32 s29, 4')
    a('s_cselect_b32 s31, 1, s31')
    a('s_cmp_eq_u32 s31, 1')
    a('s_cbranch_scc0 K1_NOADD')
    a('v_mov_b32 v20, v21')
    a('K1_NOADD:')
    a('s_cmp_ge_u32 s29, 2')
    a('s_cbranch_scc1 K1_GARR')
    a('v_lshrrev_b32 v7, 4, v6')
    a('v_lshlrev_b32 v7, 7, v7')
    a('v_bfe_u32 v8, v6, 2, 1')
    a('v_lshl_add_u32 v7, v8, 6, v7')
    a('v_and_b32 v8, 3, v6')
    a('v_lshl_add_u32 v7, v8, 2, v7')
    a('v_bfe_u32 v8, v6, 3, 1')
    a('v_lshl_add_u32 v7, v8, 4, v7')
    a('s_cmp_eq_u32 s29, 0')
    a('s_cselect_b32 s31, 32, 0')
    a('buffer_store_dword v20, v7, s[24:27], s31 offen')
    a('s_endpgm')
    a('K1_GARR:')
    a('s_sub_u32 s29, s29, 2')
    a('s_mul_i32 s31, s29, 2304')
    a('s_add_u32 s31, s31, %d' % WS_G)
    a('v_lshlrev_b32 v7, 2, v6')
    a('buffer_store_dword v20, v7, s[24:27], s31 offen')
    a('s_endpgm')
    a('K1_LN:')
    a('s_sub_u32 s28, s2, 112')
    a('s_lshl_b32 s28, s28, 4')
    a('v_lshrrev_b32 v1, 4, v0')
    a('v_add_u32 v1, s28, v1')
    a('v_and_b32 v2, 15, v0')
    a('v_mul_u32_u24 v3, 1152, v1')
    a('v_lshl_add_u32 v3, v2, 3, v3')
    for m in range(9):
        a('buffer_load_dwordx2 %s, v3, s[12:15], 0 offen offset:%d' % (vr(8 + 2 * m, 2), m * 128))
    a('v_lshrrev_b32 v4, 5, v1')
    a('v_mul_u32_u24 v4, 36864, v4')
    a('v_lshrrev_b32 v5, 2, v2')
    a('v_lshl_add_u32 v4, v5, 10, v4')
    a('v_and_b32 v5, 1, v2')
    a('v_lshl_add_u32 v4, v5, 9, v4')
    a('v_and_b32 v5, 31, v1')
    a('v_lshl_add_u32 v4, v5, 4, v4')
    a('v_bfe_u32 v5, v2, 1, 1')
    a('v_lshl_add_u32 v4, v5, 3, v4')
    X = 32
    for m in range(9):
        a('s_waitcnt vmcnt(%d)' % (8 - m))
        unpack(a, X + 4 * m, X + 4 * m + 1, 8 + 2 * m)
        unpack(a, X + 4 * m + 2, X + 4 * m + 3, 9 + 2 * m)
    ln_stats(a, X, 36, 70, lambda v: dpp_allreduce16(a, v))
    a('s_mov_b32 s30, %d' % WS_XHAT)
    for m in range(9):
        for j in range(4):
            a('v_sub_f32 v%d, v%d, v70' % (X + 4 * m + j, X + 4 * m + j))
        rnd2(a, X + 4 * m, X + 4 * m + 1, 72)
        rnd2(a, X + 4 * m + 2, X + 4 * m + 3, 73)
        for j in range(4):
            a('v_mul_f32 v%d, v%d, v71' % (X + 4 * m + j, X + 4 * m + j))
        a('v_cvt_pk_bf16_f32 v%d, v%d, v%d' % (8 + 2 * m, X + 4 * m, X + 4 * m + 1))
        a('v_cvt_pk_bf16_f32 v%d, v%d, v%d' % (9 + 2 * m, X + 4 * m + 2, X + 4 * m + 3))
        a('buffer_store_dwordx2 %s, v4, s[24:27], s30 offen' % vr(8 + 2 * m, 2))
        if m < 8:
            a('s_add_u32 s30, s30, 4096')
    a('K1_END:')
    a('s_endpgm')
    return a, descriptor('prep_kernel', 80, 40, 80), ('prep_kernel', 240, 256, 2048)


def ln_stats(a, X, n, o, allreduce):
    a('v_add_f32 v%d, v%d, v%d' % (o, X, X + 1))
    a('v_add_f32 v%d, v%d, v%d' % (o + 1, X + 2, X + 3))
    for i in range(4, n, 2):
        a('v_add_f32 v%d, v%d, v%d' % (o, o, X + i))
        a('v_add_f32 v%d, v%d, v%d' % (o + 1, o + 1, X + i + 1))
    a('v_add_f32 v%d, v%d, v%d' % (o, o, o + 1))
    allreduce(o)
    a('v_mul_f32 v%d, %s, v%d' % (o, f32(1.0 / 576), o))
    a('v_mov_b32 v%d, 0' % (o + 1))
    for i in range(n):
        t = o + 2 + (i & 1)
        a('v_sub_f32 v%d, v%d, v%d' % (t, X + i, o))
        a('v_fmac_f32 v%d, v%d, v%d' % (o + 1, t, t))
    allreduce(o + 1)
    a('v_mul_f32 v%d, %s, v%d' % (o + 1, f32(1.0 / 576), o + 1))
    rnd(a, o)
    rnd(a, o + 1)
    a('v_add_f32 v%d, %s, v%d' % (o + 1, f32(1e-5), o + 1))
    rnd(a, o + 1)
    a('v_sqrt_f32 v%d, v%d' % (o + 1, o + 1))
    a('s_nop 0')
    rnd(a, o + 1)
    a('v_rcp_f32 v%d, v%d' % (o + 1, o + 1))
    a('s_nop 0')


S_ = [0, 32]
NEGM = 64
P_ = [96, 112]
Q_ = 128
VK = 192
VV = 200
DK = 204
DV = 208
L_ = 210
SUM = 212
CHK = 214
TMP = 216
VW = 224
DW = 232
DW2 = 236
VST = 240
VCS = 241
VX = 242
O_ = 0
KF = 144
VF = 176
SK, SV, SWQ, SWO, SWS = 8, 12, 16, 20, 24
S_M0 = 28
S_KO = 29
S_VO = 30
S_CNT = 31
S_T0, S_T1 = 32, 33
S_THR = 34
S_RET = 36
S_XO = 38
S_PO = 39
S_W = 40
LDS_CS = 131072
K2_LDS = 131072 + 8192
BIAS = 30.0
THRESH = 2.0 ** 40
QSCALE = (128 ** -0.5) * LOG2E


def mfma32(d, A, B, C):
    return 'v_mfma_f32_32x32x16_bf16 %s, %s, %s, %s' % (d, A, B, C)


def cost(ins):
    op = ins.split()[0]
    if op.startswith('v_exp'):
        return 8
    return 4


def softmax_ops(p):
    ops = []
    pend = []
    k = 0
    for X in range(2):
        for pr in range(8):
            t0 = TMP + (k % 4) * 2
            k += 1
            s0 = S_[p] + X * 16 + 2 * pr
            ops.append('v_exp_f32 v%d, v%d' % (t0, s0))
            ops.append('v_exp_f32 v%d, v%d' % (t0 + 1, s0 + 1))
            ops += pend
            c = ['v_cvt_pk_bf16_f32 v%d, v%d, v%d' % (P_[p] + X * 8 + pr, t0, t0 + 1)]
            if pr == 0:
                c.append('v_add_f32 v%d, v%d, v%d' % (SUM + X, t0, t0 + 1))
            else:
                c.append('v_add_f32 v%d, v%d, v%d' % (SUM + X, SUM + X, t0))
                c.append('v_add_f32 v%d, v%d, v%d' % (SUM + X, SUM + X, t0 + 1))
            pend = c
    ops.append('s_nop 0')
    ops += pend
    ops.append('v_add_f32 v%d, v%d, v%d' % (CHK, SUM, SUM + 1))
    ops.append('v_cmp_nle_f32 vcc, v%d, v%d' % (CHK, CHK + 1))
    return ops


def dma_k(slot, soff):
    r = ['s_add_u32 m0, s%d, %d' % (S_M0, slot * 16384)]
    return r, ['buffer_load_dwordx4 v%d, s[%d:%d], %s offen offset:%d lds' % (DK + j, SK, SK + 3, soff, j * 1024)
               for j in range(4)]


def dma_v(slot, soff):
    r = ['s_add_u32 m0, s%d, %d' % (S_M0, 65536 + slot * 16384)]
    return r, ['buffer_load_dwordx4 v%d, s[%d:%d], %s offen offset:%d lds' % (DV, SV, SV + 3, soff, j * 1024)
               for j in range(4)]


def dma_w(region, slot, srd_, vbase, soff):
    r = ['s_add_u32 m0, s%d, %d' % (S_M0, region * 65536 + slot * 16384)]
    return r, ['buffer_load_dwordx4 v%d, s[%d:%d], %s offen offset:%d lds' % (vbase + j, srd_, srd_ + 3, soff, j * 1024)
               for j in range(4)]


def stage_dma(n):
    slot = n % 4
    g = []
    if n <= 8:
        for X in range(2):
            pre, d = dma_w(X, slot, SWQ, DW, 's%d' % (S_T0 + X))
            g.append((['s_mov_b32 s%d, %d' % (S_T0 + X, n * 64 * 8192 + X * 256)] + pre, d))
    elif n == 9:
        pre, d = dma_k(slot, '0')
        g.append((pre, d))
    elif n <= 41:
        t = n - 10
        pre, d = dma_k(slot, 's%d' % S_T0)
        g.append((['s_mov_b32 s%d, %d' % (S_T0, (t + 1) * 16384)] + pre, d))
        pre, d = dma_v(slot, 's%d' % S_T1)
        g.append((['s_mov_b32 s%d, %d' % (S_T1, t * 16384)] + pre, d))
    elif n <= 50:
        e = n - 42
        for T in range(2):
            if e < 8:
                off = (128 * (e & 1) + 64 * T) * 1152 + (e >> 1) * 256
                pre, d = dma_w(T, slot, SWO, DW, 's%d' % (S_T0 + T))
            else:
                off = 128 * T * 1152 + 1024
                pre, d = dma_w(T, slot, SWO, DW2, 's%d' % (S_T0 + T))
            g.append((['s_mov_b32 s%d, %d' % (S_T0 + T, off)] + pre, d))
    return g


def k_reads(slot, e):
    return ['ds_read_b128 %s, v%d offset:%d' % (ar(KF + 4 * s, 4), VK + s, slot * 16384 + e * 8192) for s in range(8)]


def v_reads(slot, e):
    r = []
    for ks in range(2):
        for dt in range(4):
            for rd in range(2):
                r.append('ds_read_b64_tr_b16 %s, v%d offset:%d' % (
                    ar(VF + (ks * 4 + dt) * 4 + rd * 2, 2), VV + dt, slot * 16384 + e * 8192 + ks * 4096 + rd * 2048))
    return r


def qk_mfmas(p, first_c=None):
    m = []
    for s in range(8):
        for X in range(2):
            d = vr(S_[p] + X * 16, 16)
            c = d if s else (vr(NEGM + X * 16, 16) if first_c is None else first_c)
            m.append(mfma32(d, ar(KF + 4 * s, 4), vr(Q_ + X * 32 + 4 * s, 4), c))
    return m


def pv_mfmas(p):
    m = []
    for ks in range(2):
        for dt in range(4):
            for X in range(2):
                d = ar(O_ + X * 64 + dt * 16, 16)
                m.append(mfma32(d, ar(VF + (ks * 4 + dt) * 4, 4), vr(P_[p] + X * 8 + ks * 4, 4), d))
    return m


def emit_gaps(a, mf, gaps, vmtag=None):
    for i, m in enumerate(mf):
        if m:
            a(m)
        for f in gaps[i]:
            if f.startswith('buffer_'):
                a.vmem(f, vmtag)
            else:
                a(f)


def spread(gaps, items, lo, hi, per=None):
    n = hi - lo + 1
    for i, it in enumerate(items):
        g = lo + (i * n) // len(items) if per is None else lo + i // per
        gaps[g].append(it)


def fill_valu(gaps, ops, lo, hi, budget):
    ops = list(ops)
    for g in range(lo, hi + 1):
        c = sum(cost(x) for x in gaps[g])
        while ops and c + cost(ops[0]) <= budget:
            c += cost(ops[0])
            gaps[g].append(ops.pop(0))
    return ops


CFG = dict(budget=20, budget_q=24)


def gen_iter(a, t_slot, dma_groups, uid, last=False, vmtag=None, vmwait='s_waitcnt vmcnt(16)', tail=()):
    budget = CFG['budget']
    for e in range(2):
        p = e
        lastunit = last and e == 1
        gq = [[] for _ in range(16)]
        a('s_waitcnt lgkmcnt(0)')
        if e == 0:
            gq[0] += [vmwait, 's_barrier']
        spread(gq, v_reads(t_slot, e), 1 if e == 0 else 0, 11)
        pre, d = dma_groups[e] if e < len(dma_groups) else ([], [])
        rest = split_softmax(p)[1]
        left = fill_valu(gq, rest, 0, 13, CFG['budget_q'])
        assert not left, left
        if d:
            gq[13] += pre + (['s_nop 0'] if lastunit else [])
            gq[14].append(d[0])
            gq[15].append(d[1])
        mf = qk_mfmas(1 - p) if not lastunit else [None] * 16
        emit_gaps(a, mf, gq, vmtag)
        a('s_cbranch_vccnz RARE_%s_%d' % (uid, e))
        a('BACK_%s_%d:' % (uid, e))
        a('s_waitcnt lgkmcnt(0)')
        gp = plan_p(1 - p, t_slot, e, d[2:] if d else [], kread=not last, soft=not lastunit)
        if e == 1:
            gp[15] += list(tail)
        emit_gaps(a, pv_mfmas(p), gp, vmtag)


def plan_p(pn, slot, e, d, kread=True, soft=True):
    gp = [[] for _ in range(16)]
    gp[0] += ['v_add_f32 v%d, v%d, v%d' % (L_, L_, SUM), 'v_add_f32 v%d, v%d, v%d' % (L_ + 1, L_ + 1, SUM + 1)]
    if d:
        gp[0].append(d[0])
        gp[1].append(d[1])
    kr = k_reads(slot, e)
    if kread:
        gp[0] += kr[0:2]
        gp[1] += kr[2:5]
        gp[2] += kr[5:8]
    else:
        gp[1] += ['s_nop 7']
    if soft:
        left = fill_valu(gp, split_softmax(pn)[0], 3, 15, CFG['budget'])
        assert not left
    return gp


def split_softmax(p):
    ops = softmax_ops(p)
    gp = [[] for _ in range(16)]
    left = fill_valu(gp, ops, 3, 15, CFG['budget'])
    n = len(ops) - len(left)
    return ops[:n], ops[n:]


def rare_path(a, p):
    a('RARE_SUB_%d:' % p)
    a('s_nop 15')
    t = VX
    for X in range(2):
        s = S_[p] + X * 16
        sn = S_[1 - p] + X * 16
        a('v_max3_f32 v%d, v%d, v%d, v%d' % (t, s, s + 1, s + 2))
        for i in range(3, 15, 2):
            a('v_max3_f32 v%d, v%d, v%d, v%d' % (t, t, s + i, s + i + 1))
        a('v_max_f32 v%d, v%d, v%d' % (t, t, s + 15))
        a('v_mov_b32 v%d, v%d' % (t + 1, t))
        a('s_nop 1')
        a('v_permlane32_swap_b32 v%d, v%d' % (t, t + 1))
        a('v_max_f32 v%d, v%d, v%d' % (t, t, t + 1))
        a('v_add_f32 v%d, %s, v%d' % (t, f32(BIAS), t))
        a('v_max_f32 v%d, 0, v%d' % (t, t))
        a('v_exp_f32 v%d, -v%d' % (t + 1, t))
        for i in range(16):
            a('v_sub_f32 v%d, v%d, v%d' % (NEGM + X * 16 + i, NEGM + X * 16 + i, t))
            a('v_sub_f32 v%d, v%d, v%d' % (s + i, s + i, t))
            a('v_sub_f32 v%d, v%d, v%d' % (sn + i, sn + i, t))
        a('v_mul_f32 v%d, v%d, v%d' % (L_ + X, L_ + X, t + 1))
        for i in range(0, 64, 4):
            for j in range(4):
                a('v_accvgpr_read_b32 v%d, a%d' % (t + 2 + j, O_ + X * 64 + i + j))
            for j in range(4):
                a('v_mul_f32 v%d, v%d, v%d' % (t + 2 + j, t + 2 + j, t + 1))
            for j in range(4):
                a('v_accvgpr_write_b32 a%d, v%d' % (O_ + X * 64 + i + j, t + 2 + j))
    for op in softmax_ops(p):
        a(op)
    a('s_nop 3')
    a('s_setpc_b64 s[%d:%d]' % (S_RET, S_RET + 1))


def gen_k2(stamps=False):
    a = Asm()
    header(a, 'attn_kernel')
    a('s_cmp_ge_u32 s2, 256')
    a('s_cbranch_scc1 K2_END')
    a('s_load_dwordx4 s[44:47], s[0:1], %d' % KA_K)
    a('s_load_dwordx4 s[48:51], s[0:1], %d' % KA_WQ)
    a('s_load_dwordx2 s[52:53], s[0:1], %d' % KA_WS)
    if stamps:
        a('s_load_dwordx2 s[70:71], s[0:1], %d' % KA_DBG)
        a('s_memtime s[60:61]')
    a('s_and_b32 s41, s2, 7')
    a('s_lshl_b32 s41, s41, 1')
    a('s_lshr_b32 s42, s2, 3')
    a('s_and_b32 s42, s42, 1')
    a('s_add_u32 s41, s41, s42')
    a('s_lshr_b32 s42, s2, 4')
    a('v_lshrrev_b32 v1, 6, v0')
    a('v_and_b32 v0, 63, v0')
    a('v_readfirstlane_b32 s%d, v1' % S_W)
    a('v_lshrrev_b32 v2, 5, v0')
    a('v_bfe_u32 v3, v0, 4, 1')
    a('v_bfe_u32 v4, v0, 2, 2')
    a('v_and_b32 v5, 3, v0')
    a('v_and_b32 v6, 15, v0')
    a('v_lshrrev_b32 v7, 4, v0')
    a('s_lshl_b32 s%d, s%d, 12' % (S_M0, S_W))
    a('v_lshl_add_u32 v8, v1, 4, v7')
    a('v_lshlrev_b32 v9, 2, v7')
    a('v_xor_b32 v9, v9, v6')
    a('v_lshlrev_b32 v10, 4, v9')
    for j in range(4):
        a('v_add_u32 v11, %d, v8' % (4 * j))
        a('v_lshlrev_b32 v11, 13, v11')
        a('v_add_u32 v11, v11, v10')
        a('v_subrev_u32 v%d, %d, v11' % (DW + j, 1024 * j))
    a('v_lshlrev_b32 v12, 4, v0')
    a('s_waitcnt lgkmcnt(0)')
    a('s_lshl_b32 s43, s41, 19')
    a('s_add_u32 s44, s44, s43')
    a('s_addc_u32 s45, s45, 0')
    a('s_add_u32 s46, s46, s43')
    a('s_addc_u32 s47, s47, 0')
    srd(a, SK, 44, 524288)
    srd(a, SV, 46, 524288)
    a('s_lshl_b32 s43, s41, 9')
    a('s_add_u32 s48, s48, s43')
    a('s_addc_u32 s49, s49, 0')
    a('s_sub_u32 s54, %d, s43' % (576 * 8192))
    srd(a, SWQ, 48, 's54')
    a('s_mul_i32 s43, s41, %d' % (256 * 1152))
    a('s_add_u32 s50, s50, s43')
    a('s_addc_u32 s51, s51, 0')
    srd(a, SWO, 50, 256 * 1152)
    srd(a, SWS, 52, WS_END)
    a('s_lshl_b32 s43, s%d, 11' % S_W)
    a('s_add_u32 m0, s43, %d' % LDS_CS)
    a('s_nop 0')
    a.vmem('buffer_load_dwordx4 v12, s[%d:%d], s43 offen lds' % (SWS, SWS + 3), 'st0')
    a.vmem('buffer_load_dwordx4 v12, s[%d:%d], s43 offen offset:1024 lds' % (SWS, SWS + 3), 'st0')

    def issue_stage(n):
        for pre, d in stage_dma(n):
            for x in pre:
                a(x)
            a('s_nop 0')
            for x in d:
                a.vmem(x, 'st%d' % n)
    issue_stage(0)
    a('s_lshl_b32 s43, s42, 2')
    a('s_add_u32 s43, s43, s%d' % S_W)
    a('s_mul_i32 s%d, s43, 36864' % S_XO)
    a('s_add_u32 s%d, s%d, %d' % (S_XO, S_XO, WS_XHAT))

    def xload(s):
        a.vmem('buffer_load_dwordx4 %s, v12, s[%d:%d], s%d offen offset:%d' % (ar(4 * s, 4), SWS, SWS + 3, S_XO, (s & 3) * 1024), 'x%d' % s)
        if s & 3 == 3:
            a('s_add_u32 s%d, s%d, 4096' % (S_XO, S_XO))
    for s in range(8):
        xload(s)
    issue_stage(1)
    for s in range(8, 36):
        xload(s)
    issue_stage(2)
    a('s_mul_i32 s%d, s43, %d' % (S_PO, 4 * 147456))
    a('s_mul_i32 s43, s41, 9216')
    a('s_add_u32 s%d, s%d, s43' % (S_PO, S_PO))
    a('s_add_u32 s%d, s%d, %d' % (S_PO, S_PO, WS_PART))
    a('v_bfe_u32 v11, v0, 3, 2')
    a('v_mul_u32_u24 v11, 147456, v11')
    a('v_and_b32 v13, 7, v0')
    a('v_lshl_add_u32 v11, v13, 5, v11')
    a('v_lshl_add_u32 v%d, v2, 4, v11' % VST)
    a('v_lshlrev_b32 v11, 8, v8')
    a('v_add_u32 v%d, v11, v10' % DV)
    for j in range(4):
        a('v_add_u32 v13, %d, v7' % (4 * j))
        a('v_xor_b32 v13, v13, v6')
        a('v_lshl_add_u32 v%d, v13, 4, v11' % (DK + j))
    a('v_lshrrev_b32 v13, 3, v9')
    a('v_lshl_add_u32 v13, v13, 6, v8')
    a('v_and_b32 v14, 7, v9')
    a('v_lshlrev_b32 v14, 4, v14')
    for j in range(4):
        a('v_add_u32 v15, %d, v13' % (4 * j))
        a('v_mul_u32_u24 v15, 1152, v15')
        a('v_add_u32 v15, v15, v14')
        a('v_subrev_u32 v%d, %d, v15' % (DW2 + j, 1024 * j))
    for j in range(4):
        a('v_add_u32 v15, %d, v8' % (4 * j))
        a('v_mul_u32_u24 v15, 1152, v15')
        a('v_add_u32 v15, v15, v10')
        a('v_subrev_u32 v%d, %d, v15' % (252 + j, 1024 * j))
    a('v_and_b32 v11, 31, v0')
    a('v_lshlrev_b32 v11, 8, v11')
    for s in range(8):
        a('v_add_u32 v13, %d, v2' % (2 * s))
        a('v_xor_b32 v13, v13, v6')
        a('v_lshl_add_u32 v%d, v13, 4, v11' % (VK + s))
    a('v_lshl_add_u32 v11, v2, 2, v4')
    a('v_lshlrev_b32 v11, 8, v11')
    a('v_lshl_add_u32 v11, v3, 5, v11')
    a('v_and_b32 v13, 1, v5')
    a('v_lshlrev_b32 v13, 1, v13')
    a('v_lshrrev_b32 v14, 1, v5')
    a('v_or_b32 v13, v13, v14')
    a('v_lshl_add_u32 v14, v5, 3, v11')
    a('v_lshl_add_u32 v13, v13, 3, v11')
    for dt in range(4):
        a('v_xor_b32 v15, %d, v4' % dt)
        a('v_lshlrev_b32 v15, 6, v15')
        a('v_add_u32 v%d, v15, v13' % (VW + dt))
        a('v_add_u32 v%d, 0x10000, v%d' % (VW + 4 + dt, VW + dt))
        a('v_add_u32 v15, v15, v14')
        a('v_add_u32 v%d, 0x10000, v15' % (VV + dt))
    a('v_lshlrev_b32 v%d, 6, v2' % VCS)
    a('v_add_u32 v%d, %d, v%d' % (VCS, LDS_CS, VCS))
    a('v_mov_b32 v%d, %s' % (CHK + 1, f32(THRESH)))

    AF = [KF, VF]
    CS = [128, 144]
    BF = [160, 164]
    XR = 168
    XU = 172

    def w_reads(buf, slot, ks):
        r = []
        for X in range(2):
            for dt in range(4):
                for rd in range(2):
                    r.append('ds_read_b64_tr_b16 %s, v%d offset:%d' % (
                        ar(AF[buf] + (X * 4 + dt) * 4 + rd * 2, 2), VW + X * 4 + dt, slot * 16384 + ks * 4096 + rd * 2048))
        return r

    def cs_reads(s):
        return ['ds_read_b128 %s, v%d offset:%d' % (vr(CS[s & 1] + 4 * i, 4), VCS, s * 128 + 16 * i) for i in range(4)]

    def b_ops(s):
        r = []
        for i in range(4):
            r.append('v_accvgpr_read_b32 v%d, a%d' % (XR + i, 4 * s + i))
        for i in range(4):
            r.append('v_lshlrev_b32 v%d, 16, v%d' % (XU + 2 * i, XR + i))
            r.append('v_and_b32 v%d, 0xffff0000, v%d' % (XU + 2 * i + 1, XR + i))
        for i in range(8):
            r.append('v_fma_f32 v%d, v%d, v%d, v%d' % (XU + i, XU + i, CS[s & 1] + i, CS[s & 1] + 8 + i))
        for i in range(4):
            r.append('v_cvt_pk_bf16_f32 v%d, v%d, v%d' % (BF[s & 1] + i, XU + 2 * i, XU + 2 * i + 1))
        return r

    a.wait_vm('x0')
    a('s_barrier')
    for x in cs_reads(0) + w_reads(0, 0, 0)[:8]:
        a(x)
    issue_stage(3)
    for x in w_reads(0, 0, 0)[8:] + cs_reads(1):
        a(x)
    a('s_waitcnt lgkmcnt(12)')
    for x in b_ops(0):
        a(x)
    a('s_nop 0')
    pending_dma = []
    for s in range(36):
        gaps = [[] for _ in range(8)]
        a('s_waitcnt lgkmcnt(0)')
        first = 0
        if s & 3 == 3:
            n = (s >> 2) + 1
            gaps[0] += ['s_waitcnt vmcnt(%d)' % a.wait_vm_n('st%d' % n), 's_barrier']
            pending_dma = []
            for pre, d in stage_dma(n + 3):
                pending_dma.append((pre, d[0], d[1], n + 3))
                pending_dma.append(([], d[2], d[3], n + 3))
        if s < 35:
            rd = w_reads((s + 1) & 1, ((s + 1) >> 2) % 4, (s + 1) & 3)
            spread(gaps, rd, 0, 5, per=3)
        else:
            spread(gaps, k_reads(9 % 4, 0), 0, 5, per=2)
        if s + 2 < 36:
            gaps[5] += cs_reads(s + 2)[:2]
            gaps[6] += cs_reads(s + 2)[2:]
        tag = None
        if pending_dma:
            pre, d0, d1, nn = pending_dma.pop(0)
            gaps[5] += pre
            gaps[6].append(d0)
            gaps[7].append(d1)
            tag = 'st%d' % nn
        if s < 35:
            if 'x%d' % (s + 1) in a.vm:
                gaps[0].insert(0, 's_waitcnt vmcnt(%d)' % a.wait_vm_n('x%d' % (s + 1)))
            spread(gaps, b_ops(s + 1), 0, 6)
        mf = []
        for i in range(8):
            d = vr(16 * i, 16)
            mf.append(mfma32(d, ar(AF[s & 1] + 4 * i, 4), vr(BF[s & 1], 4), d if s else '0'))
        emit_gaps(a, mf, gaps, tag)
    for pre, d0, d1, nn in pending_dma:
        for x in pre:
            a(x)
        a('s_nop 0')
        a.vmem(d0, 'st%d' % nn)
        a.vmem(d1, 'st%d' % nn)
    for j in range(4):
        a('v_mov_b32 v%d, v%d' % (DW + j, 252 + j))
    a('s_mov_b32 s%d, %s' % (S_T0, f32(QSCALE)))
    a('s_nop 7')
    for i in range(8):
        for r in range(0, 16, 2):
            v0 = 16 * i + r
            a('v_mul_f32 v%d, s%d, v%d' % (v0, S_T0, v0))
            a('v_mul_f32 v%d, s%d, v%d' % (v0 + 1, S_T0, v0 + 1))
            a('v_cvt_pk_bf16_f32 v%d, v%d, v%d' % (Q_ + i * 8 + r // 2, v0, v0 + 1))
    a('s_waitcnt lgkmcnt(0)')
    gaps = [[] for _ in range(16)]
    kr = k_reads(9 % 4, 1)
    for s in range(8):
        gaps[2 * s + 1].append(kr[s])
    spread(gaps, ['v_accvgpr_write_b32 a%d, 0' % (O_ + i) for i in range(128)], 0, 15)
    emit_gaps(a, qk_mfmas(0, '0'), gaps)
    a('v_mov_b32 v%d, 0' % L_)
    a('v_mov_b32 v%d, 0' % (L_ + 1))
    a('s_nop 7')
    t = VX
    for X in range(2):
        s = S_[0] + X * 16
        a('v_max3_f32 v%d, v%d, v%d, v%d' % (t, s, s + 1, s + 2))
        for i in range(3, 15, 2):
            a('v_max3_f32 v%d, v%d, v%d, v%d' % (t, t, s + i, s + i + 1))
        a('v_max_f32 v%d, v%d, v%d' % (t, t, s + 15))
        a('v_mov_b32 v%d, v%d' % (t + 1, t))
        a('s_nop 1')
        a('v_permlane32_swap_b32 v%d, v%d' % (t, t + 1))
        a('v_max_f32 v%d, v%d, v%d' % (t, t, t + 1))
        a('v_add_f32 v%d, %s, v%d' % (t, f32(BIAS), t))
        for i in range(16):
            a('v_sub_f32 v%d, 0, v%d' % (NEGM + X * 16 + i, t))
            a('v_sub_f32 v%d, v%d, v%d' % (s + i, s + i, t))
    for op in split_softmax(0)[0]:
        a(op)
    assert a.vm == ['st10'] * 8 + ['st11'] * 8 + ['st12'] * 8, a.vm
    if stamps:
        a('s_memtime s[62:63]')
    a('s_mov_b32 s%d, %d' % (S_KO, 4 * 16384))
    a('s_mov_b32 s%d, %d' % (S_VO, 3 * 16384))
    a('s_mov_b32 s%d, 7' % S_CNT)
    a('.p2align 6')
    a('K2_LOOP:')
    loop_start = len(a.lines)
    for i in range(4):
        slot = (i + 2) % 4
        ds = (i + 2 + 3) % 4
        pk, dk = dma_k(ds, 's%d' % S_KO)
        pv, dv = dma_v(ds, 's%d' % S_VO)
        tail = ['s_add_u32 s%d, s%d, 16384' % (S_KO, S_KO), 's_add_u32 s%d, s%d, 16384' % (S_VO, S_VO)]
        if i == 3:
            tail += ['s_sub_u32 s%d, s%d, 1' % (S_CNT, S_CNT), 's_cmp_lg_u32 s%d, 0' % S_CNT]
        gen_iter(a, slot, [(pk, dk), (pv, dv)], 'L%d' % i, tail=tail)
    a('s_cbranch_scc1 K2_LOOP')
    loop_end = len(a.lines)
    a.vm = ['st38'] * 8 + ['st39'] * 8 + ['st40'] * 8
    for t_ in range(28, 32):
        n = 10 + t_
        w = 's_waitcnt vmcnt(%d)' % a.wait_vm_n('st%d' % n)
        gen_iter(a, n % 4, stage_dma(n + 3), 'T%d' % t_, last=(t_ == 31), vmtag='st%d' % (n + 3), vmwait=w)
    if stamps:
        a('s_memtime s[64:65]')
    OB = Q_
    a('s_nop 7')
    for X in range(2):
        a('v_mov_b32 v%d, v%d' % (t, L_ + X))
        a('s_nop 1')
        a('v_permlane32_swap_b32 v%d, v%d' % (t, L_ + X))
        a('v_add_f32 v%d, v%d, v%d' % (t, t, L_ + X))
        a('v_rcp_f32 v%d, v%d' % (L_ + X, t))
    def e_reads(buf, e, T, half):
        slot = (42 + e) % 4
        r = []
        for k2 in range(2):
            ks = 2 * half + k2
            for dt in range(4):
                for rd in range(2):
                    r.append('ds_read_b64_tr_b16 %s, v%d offset:%d' % (
                        ar(AF[buf] + (k2 * 4 + dt) * 4 + rd * 2, 2), VW + T * 4 + dt, slot * 16384 + ks * 4096 + rd * 2048))
        return r
    a.wait_vm('st42')
    a('s_barrier')
    for x in e_reads(0, 0, 0, 0):
        a(x)
    pending_dma = []
    for pre, d in stage_dma(45):
        pending_dma.append((pre, d[0], d[1], 45))
        pending_dma.append(([], d[2], d[3], 45))
    pre, d0, d1, nn = pending_dma.pop(0)
    for x in pre:
        a(x)
    a('s_nop 0')
    a.vmem(d0, 'st%d' % nn)
    a.vmem(d1, 'st%d' % nn)
    for X in range(2):
        for i in range(0, 64, 4):
            for j in range(4):
                a('v_accvgpr_read_b32 v%d, a%d' % (t + j, O_ + X * 64 + i + j))
            for j in range(4):
                a('v_mul_f32 v%d, v%d, v%d' % (t + j, t + j, L_ + X))
            a('v_cvt_pk_bf16_f32 v%d, v%d, v%d' % (OB + X * 32 + i // 2, t, t + 1))
            a('v_cvt_pk_bf16_f32 v%d, v%d, v%d' % (OB + X * 32 + i // 2 + 1, t + 2, t + 3))
    ACC = [0, 64]
    steps = [(e, T, half) for e in range(9) for T in range(2) for half in range(2)]
    pend_out = []

    def out_ops(grp, ntiles):
        r = []
        acc = ACC[grp & 1]
        for nt in range(ntiles):
            for rb in range(2):
                n16 = grp * 8 + nt * 2 + rb
                tb = 192 + ((nt * 2 + rb) & 3) * 4
                for i in range(4):
                    s0 = acc + nt * 16 + rb * 8 + 2 * i
                    r.append('v_cvt_pk_bf16_f32 v%d, v%d, v%d' % (tb + i, s0, s0 + 1))
                if n16 % 16 == 0 and n16:
                    r.append('s_add_u32 s%d, s%d, 4096' % (S_PO, S_PO))
                r.append('buffer_store_dwordx4 %s, v%d, s[%d:%d], s%d offen offset:%d' % (
                    vr(tb, 4), VST, SWS, SWS + 3, S_PO, (n16 % 16) * 256))
        return r

    for si, (e, T, half) in enumerate(steps):
        gaps = [[] for _ in range(8)]
        a('s_waitcnt lgkmcnt(0)')
        if si + 1 < len(steps):
            e2, T2, h2 = steps[si + 1]
            if e2 != e:
                n = 42 + e2
                gaps[0] += ['s_waitcnt vmcnt(%d)' % a.wait_vm_n('st%d' % n), 's_barrier']
                assert not pending_dma
                for pre, d in stage_dma(n + 3):
                    pending_dma.append((pre, d[0], d[1], n + 3))
                    pending_dma.append(([], d[2], d[3], n + 3))
            spread(gaps, e_reads((si + 1) & 1, e2, T2, h2), 0, 5, per=3)
        tagmap = {}
        if pending_dma:
            pre, d0, d1, nn = pending_dma.pop(0)
            gaps[5] += pre
            gaps[6].append(d0)
            gaps[7].append(d1)
            tagmap[d0] = tagmap[d1] = 'st%d' % nn
        grp = e >> 1 if e < 8 else 4
        first_of_group = (e < 8 and (e & 1) == 0 and T == 0 and half == 0) or (e == 8 and T == 0 and half == 0)
        if pend_out and not first_of_group:
            take = pend_out[:15]
            pend_out = pend_out[15:]
            spread(gaps, take, 0, 7)
        if first_of_group and grp > 0:
            assert not pend_out
            pend_out = out_ops(grp - 1, 4)
        mf = []
        for k2 in range(2):
            for dt in range(4):
                ks = 2 * half + k2
                if e < 8:
                    kk = (e & 1) * 8 + T * 4 + ks
                    nt = dt
                    firstk = kk == 0
                else:
                    kk = T * 8 + (dt >> 1) * 4 + ks
                    nt = dt & 1
                    firstk = kk == 0
                d = vr(ACC[grp & 1] + nt * 16, 16)
                mf.append(mfma32(d, ar(AF[si & 1] + (k2 * 4 + dt) * 4, 4), vr(OB + kk * 4, 4), '0' if firstk else d))
        for i, m in enumerate(mf):
            a(m)
            for f in gaps[i]:
                if f.startswith('buffer_'):
                    a.vmem(f, tagmap.get(f, 'store'))
                else:
                    a(f)
    assert not pend_out, len(pend_out)
    a('s_nop 15')
    for x in out_ops(4, 2):
        a(x)
    if stamps:
        a('s_waitcnt vmcnt(0)')
        a('s_memtime s[66:67]')
        a('s_waitcnt lgkmcnt(0)')
        a('s_sub_u32 s62, s62, s60')
        a('s_sub_u32 s64, s64, s60')
        a('s_sub_u32 s66, s66, s60')
        a('s_cmp_lg_u32 s%d, 0' % S_W)
        a('s_cbranch_scc1 K2_END')
        a('s_cmp_ge_u32 s2, 16')
        a('s_cbranch_scc1 K2_END')
        srd(a, 72, 70, 256)
        a('v_mov_b32 v0, s62')
        a('v_mov_b32 v1, s64')
        a('v_mov_b32 v2, s66')
        a('v_mov_b32 v3, 0')
        a('s_lshl_b32 s43, s2, 4')
        a('v_mov_b32 v4, 0')
        a('buffer_store_dwordx4 v[0:3], v4, s[72:75], s43 offen')
    a('K2_END:')
    a('s_endpgm')
    main_end = len(a.lines)
    for uid in ['L0', 'L1', 'L2', 'L3', 'T28', 'T29', 'T30', 'T31']:
        for e in range(2):
            a('RARE_%s_%d:' % (uid, e))
            a('s_call_b64 s[%d:%d], RARE_SUB_%d' % (S_RET, S_RET + 1, e))
            a('s_branch BACK_%s_%d' % (uid, e))
    rare_path(a, 0)
    rare_path(a, 1)
    trace = a.lines[:loop_end] + a.lines[loop_start:]
    a.trace = trace
    return a, descriptor('attn_kernel', 512, 96, 256), ('attn_kernel', 256, 256, K2_LDS)


def gen_k3():
    a = Asm()
    header(a, 'ln2_kernel')
    a('s_cmp_ge_u32 s2, 256')
    a('s_cbranch_scc1 K3_END')
    a('s_load_dwordx2 s[4:5], s[0:1], %d' % KA_X)
    a('s_load_dwordx2 s[6:7], s[0:1], %d' % KA_WS)
    a('s_load_dwordx2 s[8:9], s[0:1], %d' % KA_WR)
    a('s_load_dwordx2 s[10:11], s[0:1], %d' % KA_OUT)
    a('v_lshlrev_b32 v1, 4, v0')
    a('v_lshrrev_b32 v2, 4, v0')
    a('v_bfe_u32 v3, v0, 1, 3')
    a('v_and_b32 v4, 1, v0')
    a('v_lshlrev_b32 v5, 5, v2')
    a('v_lshl_add_u32 v5, v4, 4, v5')
    a('v_mul_u32_u24 v6, 1152, v3')
    a('v_add_u32 v6, v6, v5')
    a('v_lshlrev_b32 v7, 1, v5')
    a('s_mul_i32 s28, s2, 147456')
    a('s_add_u32 s28, s28, %d' % WS_PART)
    a('s_mul_i32 s29, s2, 9216')
    a('s_waitcnt lgkmcnt(0)')
    srd(a, 12, 4, 2359296)
    srd(a, 16, 8, 1152)
    srd(a, 20, 10, 2359296)
    srd(a, 24, 6, WS_END)
    PB = 16
    for g in range(16):
        a('buffer_load_dwordx4 %s, v1, s[24:27], s28 offen' % vr(PB + 4 * g, 4))
        if g < 15:
            a('s_add_u32 s28, s28, 9216')
    a('buffer_load_dwordx4 v[80:83], v6, s[12:15], s29 offen')
    a('s_mov_b32 s30, %d' % WS_G)
    a('s_mov_b32 s31, %d' % (WS_G + 2 * 2304))
    GA, SB, CB, GB = 84, 92, 100, 108
    a('buffer_load_dwordx4 v[84:87], v7, s[24:27], s30 offen')
    a('buffer_load_dwordx4 v[88:91], v7, s[24:27], s30 offen offset:16')
    a('buffer_load_dwordx4 v[92:95], v7, s[24:27], s30 offen offset:2304')
    a('buffer_load_dwordx4 v[96:99], v7, s[24:27], s30 offen offset:2320')
    a('buffer_load_dwordx4 v[100:103], v7, s[24:27], s31 offen')
    a('buffer_load_dwordx4 v[104:107], v7, s[24:27], s31 offen offset:16')
    a('buffer_load_dwordx4 v[108:111], v7, s[24:27], s31 offen offset:2304')
    a('buffer_load_dwordx4 v[112:115], v7, s[24:27], s31 offen offset:2320')
    a('buffer_load_dwordx4 v[116:119], v5, s[16:19], 0 offen')
    A = 8
    for g in range(16):
        a('s_waitcnt vmcnt(%d)' % (25 - g))
        for j in range(4):
            src = PB + 4 * g + j
            if g == 0:
                unpack(a, A + 2 * j, A + 2 * j + 1, src)
            else:
                unpack(a, 120, 121, src)
                a('v_add_f32 v%d, v%d, v120' % (A + 2 * j, A + 2 * j))
                a('v_add_f32 v%d, v%d, v121' % (A + 2 * j + 1, A + 2 * j + 1))
    a('s_waitcnt vmcnt(7)')
    X = 16
    for j in range(4):
        rnd2(a, A + 2 * j, A + 2 * j + 1, 120)
    for j in range(8):
        a('v_mul_f32 v%d, v%d, v%d' % (A + j, A + j, GA + j))
    for j in range(4):
        rnd2(a, A + 2 * j, A + 2 * j + 1, 120)
        unpack(a, X + 2 * j, X + 2 * j + 1, 80 + j)
    for j in range(8):
        a('v_add_f32 v%d, v%d, v%d' % (X + j, X + j, A + j))
    for j in range(4):
        rnd2(a, X + 2 * j, X + 2 * j + 1, 24 + j)
    a('s_add_u32 s30, s29, %d' % WS_X2)
    a('buffer_store_dwordx4 v[24:27], v6, s[24:27], s30 offen')
    a('v_lshrrev_b32 v28, 6, v0')
    a('v_lshlrev_b32 v29, 6, v3')
    a('v_lshl_add_u32 v28, v28, 2, v29')
    cnt = [0]

    def allreduce(v):
        off = cnt[0] * 512
        cnt[0] += 1
        a('s_nop 1')
        a('v_add_f32_dpp v%d, v%d, v%d quad_perm:[1,0,3,2] row_mask:0xf bank_mask:0xf' % (v, v, v))
        a('v_mov_b32 v30, v%d' % v)
        a('s_nop 1')
        a('v_permlane16_swap_b32 v30, v%d' % v)
        a('v_add_f32 v%d, v%d, v30' % (v, v))
        a('v_mov_b32 v30, v%d' % v)
        a('s_nop 1')
        a('v_permlane32_swap_b32 v30, v%d' % v)
        a('v_add_f32 v%d, v%d, v30' % (v, v))
        a('ds_write_b32 v28, v%d offset:%d' % (v, off))
        a('s_waitcnt lgkmcnt(0)')
        a('s_barrier')
        a('ds_read_b128 v[32:35], v29 offset:%d' % off)
        a('ds_read_b128 v[36:39], v29 offset:%d' % (off + 16))
        a('ds_read_b32 v40, v29 offset:%d' % (off + 32))
        a('s_waitcnt lgkmcnt(0)')
        a('v_add_f32 v32, v32, v33')
        a('v_add_f32 v34, v34, v35')
        a('v_add_f32 v36, v36, v37')
        a('v_add_f32 v38, v38, v39')
        a('v_add_f32 v32, v32, v34')
        a('v_add_f32 v36, v36, v38')
        a('v_add_f32 v32, v32, v40')
        a('v_add_f32 v%d, v32, v36' % v)
    ln_stats(a, X, 8, 44, allreduce)
    H = 48
    for j in range(8):
        a('v_sub_f32 v%d, v%d, v44' % (H + j, X + j))
    for j in range(4):
        rnd2(a, H + 2 * j, H + 2 * j + 1, 120)
    for j in range(8):
        a('v_mul_f32 v%d, v%d, v45' % (H + j, H + j))
    for j in range(4):
        rnd2(a, H + 2 * j, H + 2 * j + 1, 120)
    a('s_waitcnt vmcnt(1)')
    for j in range(8):
        a('v_mul_f32 v%d, v%d, v%d' % (H + j, H + j, CB + j))
    for j in range(4):
        rnd2(a, H + 2 * j, H + 2 * j + 1, 120)
    for j in range(8):
        a('v_add_f32 v%d, v%d, v%d' % (H + j, H + j, SB + j))
    for j in range(4):
        rnd2(a, H + 2 * j, H + 2 * j + 1, 56 + j)
    a('s_add_u32 s30, s29, %d' % WS_H2)
    a('buffer_store_dwordx4 v[56:59], v6, s[24:27], s30 offen')
    for j in range(4):
        unpack(a, 120, 121, 116 + j)
        if j == 0:
            a('v_mul_f32 v46, v120, v%d' % H)
        else:
            a('v_fmac_f32 v46, v120, v%d' % (H + 2 * j))
        a('v_fmac_f32 v46, v121, v%d' % (H + 2 * j + 1))
    for j in range(8):
        a('v_mul_f32 v%d, v%d, v%d' % (60 + j, H + j, GB + j))
    for j in range(4):
        rnd2(a, 60 + 2 * j, 61 + 2 * j, 120)
    for j in range(8):
        a('v_add_f32 v%d, v%d, v%d' % (60 + j, 60 + j, X + j))
    for j in range(4):
        a('v_cvt_pk_bf16_f32 v%d, v%d, v%d' % (68 + j, 60 + 2 * j, 61 + 2 * j))
    a('buffer_store_dwordx4 v[68:71], v6, s[20:23], s29 offen')
    allreduce(46)
    rnd(a, 46)
    a('v_ashrrev_i32 v47, 31, v46')
    a('v_or_b32 v47, 0x80000000, v47')
    a('v_xor_b32 v46, v46, v47')
    a('v_and_b32 v46, 0xffff0000, v46')
    a('s_lshl_b32 s30, s2, 3')
    a('s_sub_u32 s30, 2047, s30')
    a('v_sub_u32 v47, s30, v3')
    a('v_or_b32 v46, v46, v47')
    a('v_lshlrev_b32 v47, 2, v3')
    a('s_lshl_b32 s30, s2, 5')
    a('s_add_u32 s30, s30, %d' % WS_KEY)
    a('v_cmp_gt_u32 vcc, 16, v0')
    a('s_and_saveexec_b64 s[32:33], vcc')
    a('s_cbranch_execz K3_END')
    a('buffer_store_dword v46, v47, s[24:27], s30 offen')
    a('K3_END:')
    a('s_endpgm')
    return a, descriptor('ln2_kernel', 128, 40, 128), ('ln2_kernel', 256, 576, 2048)


K4_G, K4_U, K4_D, K4_X = 0, 18432, 36864, 55296
K4_LDS = 55296 + 4096


def gen_k4():
    a = Asm()
    header(a, 'moe_kernel')
    a('s_cmp_ge_u32 s2, 288')
    a('s_cbranch_scc1 K4_END')
    a('s_load_dwordx4 s[4:7], s[0:1], %d' % KA_WG)
    a('s_load_dwordx2 s[8:9], s[0:1], %d' % KA_WD)
    a('s_load_dwordx2 s[10:11], s[0:1], %d' % KA_WS)
    a('s_and_b32 s28, s2, 7')
    a('s_mul_i32 s28, s28, 36')
    a('s_lshr_b32 s29, s2, 3')
    a('s_add_u32 s28, s28, s29')
    a('v_lshrrev_b32 v1, 6, v0')
    a('v_and_b32 v0, 63, v0')
    a('v_readfirstlane_b32 s40, v1')
    a('v_lshlrev_b32 v2, 4, v0')
    a('v_lshrrev_b32 v3, 1, v0')
    a('v_mul_u32_u24 v3, 9216, v3')
    a('v_and_b32 v4, 1, v0')
    a('v_lshl_add_u32 v3, v4, 4, v3')
    a('s_waitcnt lgkmcnt(0)')
    srd(a, 12, 4, 576 * 9216)
    srd(a, 16, 6, 576 * 9216)
    srd(a, 20, 8, 4608 * 1152)
    srd(a, 24, 10, WS_END)
    a('s_mov_b32 s30, %d' % WS_KEY)
    a('s_mov_b32 s31, %d' % (WS_KEY + 4096))
    for i in range(8):
        a.vmem('buffer_load_dwordx4 %s, v2, s[24:27], s%d offen offset:%d' % (vr(16 + 4 * i, 4), 30 + (i >> 2), (i & 3) * 1024), 'key')
    a('s_and_b32 s32, s40, 1')
    a('s_mul_i32 s33, s32, %d' % (288 * 9216))
    a('s_lshl_b32 s34, s28, 5')
    a('s_add_u32 s33, s33, s34')
    a('s_mul_i32 s35, s40, 9216')
    a('s_cmp_ge_u32 s40, 2')
    a('s_cselect_b32 s12, s16, s12')
    a('s_cselect_b32 s13, s17, s13')
    for i in range(9):
        a('s_add_u32 m0, s35, %d' % (i * 1024))
        a('s_nop 0')
        a.vmem('buffer_load_dwordx4 v3, s[12:15], s33 offen lds', 'w')
        if i < 8:
            a('s_add_u32 s33, s33, %d' % (32 * 9216))
    a('s_mul_i32 s33, s28, 18432')
    a('s_lshl_b32 s34, s40, 10')
    a('s_add_u32 s33, s33, s34')
    a('s_add_u32 s35, s34, %d' % K4_D)
    for i in range(4):
        a('s_add_u32 m0, s35, %d' % (i * 4096))
        a('s_nop 0')
        a.vmem('buffer_load_dwordx4 v2, s[20:23], s33 offen lds', 'w')
        a('s_add_u32 s33, s33, 4096')
    a('s_cmp_ge_u32 s40, 2')
    a('s_cbranch_scc1 K4_NOD')
    a('s_add_u32 m0, s35, %d' % (4 * 4096))
    a('s_nop 0')
    a('buffer_load_dwordx4 v2, s[20:23], s33 offen lds')
    a('K4_NOD:')
    a('s_waitcnt vmcnt(13)')
    a('v_and_b32 v5, 7, v0')
    a('v_mov_b32 v6, 0')
    a('s_mov_b32 s36, -1')
    for rnd_ in range(8):
        D = 48
        for i in range(32):
            a('v_sub_u32 v%d, s36, v%d' % (D + i, 16 + i))
        a('v_min3_u32 v8, v%d, v%d, v%d' % (D, D + 1, D + 2))
        a('v_min3_u32 v9, v%d, v%d, v%d' % (D + 3, D + 4, D + 5))
        for i in range(6, 30, 4):
            a('v_min3_u32 v8, v8, v%d, v%d' % (D + i, D + i + 1))
            a('v_min3_u32 v9, v9, v%d, v%d' % (D + i + 2, D + i + 3))
        a('v_min3_u32 v8, v8, v%d, v%d' % (D + 30, D + 31))
        a('v_min_u32 v8, v8, v9')
        dpp_allreduce16(a, 8, 'v_min_u32')
        a('s_nop 0')
        a('v_readlane_b32 s41, v8, 0')
        a('v_readlane_b32 s42, v8, 16')
        a('v_readlane_b32 s43, v8, 32')
        a('v_readlane_b32 s44, v8, 48')
        a('v_cmp_eq_u32 vcc, %d, v5' % rnd_)
        a('s_min_u32 s41, s41, s42')
        a('s_min_u32 s43, s43, s44')
        a('s_min_u32 s41, s41, s43')
        a('s_sub_u32 s37, s36, s41')
        a('v_mov_b32 v9, s37')
        a('s_sub_u32 s36, s37, 1')
        a('v_cndmask_b32 v6, v6, v9, vcc')
    a('s_cmp_lg_u32 s2, 0')
    a('s_cbranch_scc1 K4_NOPUB')
    a('s_cmp_lg_u32 s40, 0')
    a('s_cbranch_scc1 K4_NOPUB')
    a('v_lshlrev_b32 v9, 2, v5')
    a('s_mov_b32 s30, %d' % WS_SEL)
    a('buffer_store_dword v6, v9, s[24:27], s30 offen')
    a('K4_NOPUB:')
    a('v_and_b32 v7, 0x7ff, v6')
    a('v_sub_u32 v7, 2047, v7')
    a('v_mul_u32_u24 v7, 1152, v7')
    a('v_lshrrev_b32 v8, 4, v0')
    a('v_lshl_add_u32 v7, v8, 4, v7')
    a('s_mul_i32 s30, s32, 576')
    a('s_add_u32 s30, s30, %d' % WS_H2)
    for ks in range(9):
        a('buffer_load_dwordx4 %s, v7, s[24:27], s30 offen offset:%d' % (vr(16 + 4 * ks, 4), ks * 64))
    a('v_and_b32 v9, 15, v0')
    a('v_lshrrev_b32 v10, 2, v9')
    a('v_lshl_add_u32 v10, v8, 3, v10')
    a('v_lshlrev_b32 v10, 5, v10')
    a('v_and_b32 v11, 3, v0')
    a('v_lshl_add_u32 v10, v11, 3, v10')
    a('s_mul_i32 s35, s40, 9216')
    a('v_add_u32 v10, s35, v10')
    a('s_waitcnt vmcnt(9)')
    for ks in range(9):
        a('ds_read_b64_tr_b16 %s, v10 offset:%d' % (vr(56 + 4 * ks, 2), ks * 1024))
        a('ds_read_b64_tr_b16 %s, v10 offset:%d' % (vr(58 + 4 * ks, 2), ks * 1024 + 128))
        if ks == 6:
            a('s_waitcnt lgkmcnt(8)')
    a('s_waitcnt vmcnt(0) lgkmcnt(0)')
    for ks in range(9):
        a('v_mfma_f32_16x16x32_bf16 v[12:15], %s, %s, %s' % (vr(56 + 4 * ks, 4), vr(16 + 4 * ks, 4), 'v[12:15]' if ks else '0'))
    a('s_lshl_b32 s35, s40, 10')
    a('v_add_u32 v11, s35, v2')
    a('s_nop 7')
    a('ds_write_b128 v11, v[12:15] offset:%d' % K4_X)
    a('s_waitcnt lgkmcnt(0)')
    a('s_barrier')
    for i in range(4):
        a('ds_read_b128 %s, v2 offset:%d' % (vr(16 + 4 * i, 4), K4_X + i * 1024))
    a('v_lshrrev_b32 v10, 2, v9')
    a('v_lshl_add_u32 v10, v8, 2, v10')
    a('v_mul_u32_u24 v10, 1152, v10')
    a('v_and_b32 v11, 3, v0')
    a('v_lshl_add_u32 v10, v11, 3, v10')
    a('s_mul_i32 s35, s40, 288')
    a('v_add_u32 v10, s35, v10')
    for i in range(9):
        a('ds_read_b64_tr_b16 %s, v10 offset:%d' % (vr(56 + 2 * i, 2), K4_D + i * 32))
    a('s_waitcnt lgkmcnt(9)')
    for j in range(4):
        a('v_add_f32 v%d, v%d, v%d' % (16 + j, 16 + j, 20 + j))
        a('v_add_f32 v%d, v%d, v%d' % (24 + j, 24 + j, 28 + j))
    rnd2(a, 16, 17, 32)
    rnd2(a, 18, 19, 32)
    rnd2(a, 24, 25, 32)
    rnd2(a, 26, 27, 32)
    for j in range(4):
        a('v_mul_f32 v%d, %s, v%d' % (20 + j, f32(-LOG2E), 16 + j))
    for j in range(4):
        a('v_exp_f32 v%d, v%d' % (20 + j, 20 + j))
    for j in range(4):
        a('v_add_f32 v%d, 1.0, v%d' % (20 + j, 20 + j))
    for j in range(4):
        a('v_rcp_f32 v%d, v%d' % (20 + j, 20 + j))
    for j in range(4):
        a('v_mul_f32 v%d, v%d, v%d' % (16 + j, 16 + j, 20 + j))
    rnd2(a, 16, 17, 32)
    rnd2(a, 18, 19, 32)
    for j in range(4):
        a('v_mul_f32 v%d, v%d, v%d' % (16 + j, 16 + j, 24 + j))
    a('v_cvt_pk_bf16_f32 v20, v16, v17')
    a('v_cvt_pk_bf16_f32 v21, v18, v19')
    a('v_mul_u32_u24 v11, 2304, v9')
    a('v_lshl_add_u32 v11, v8, 4, v11')
    a('s_mul_i32 s30, s28, 18432')
    a('s_mul_i32 s31, s40, 576')
    a('s_add_u32 s30, s30, s31')
    a('s_add_u32 s30, s30, %d' % WS_YP)
    a('s_waitcnt lgkmcnt(0)')
    for i in range(9):
        a('v_mfma_f32_16x16x16_bf16 %s, %s, v[20:21], 0' % (vr(76 + 4 * i, 4), vr(56 + 2 * i, 2)))
    a('v_cmp_gt_u32 vcc, 8, v9')
    a('s_and_saveexec_b64 s[38:39], vcc')
    a('s_nop 7')
    for i in range(9):
        a('buffer_store_dwordx4 %s, v11, s[24:27], s30 offen offset:%d' % (vr(76 + 4 * i, 4), i * 64))
    a('K4_END:')
    a('s_endpgm')
    return a, descriptor('moe_kernel', 112, 48, 112), ('moe_kernel', 288, 256, K4_LDS)


def gen_k5():
    a = Asm()
    header(a, 'fin_kernel')
    a('s_cmp_ge_u32 s2, 144')
    a('s_cbranch_scc1 K5_END')
    a('s_load_dwordx2 s[6:7], s[0:1], %d' % KA_WS)
    a('s_load_dwordx2 s[10:11], s[0:1], %d' % KA_OUT)
    a('s_mul_i32 s28, s2, 3641')
    a('s_lshr_b32 s28, s28, 16')
    a('s_mul_i32 s29, s28, 18')
    a('s_sub_u32 s29, s2, s29')
    a('v_lshrrev_b32 v1, 3, v0')
    a('v_and_b32 v2, 7, v0')
    a('v_mul_u32_u24 v3, 18432, v1')
    a('v_lshl_add_u32 v3, v2, 4, v3')
    a('s_lshl_b32 s30, s2, 7')
    a('s_add_u32 s30, s30, %d' % WS_YP)
    a('s_lshl_b32 s31, s28, 2')
    a('s_add_u32 s31, s31, %d' % WS_SEL)
    a('v_mov_b32 v4, 0')
    a('s_waitcnt lgkmcnt(0)')
    srd(a, 20, 10, 2359296)
    srd(a, 24, 6, WS_END)
    a('buffer_load_dword v5, v4, s[24:27], s31 offen')
    for i in range(9):
        a('buffer_load_dwordx4 %s, v3, s[24:27], s30 offen' % vr(16 + 4 * i, 4))
        if i < 8:
            a('s_add_u32 s30, s30, %d' % (32 * 18432))
    a('s_lshl_b32 s32, s29, 7')
    a('s_add_u32 s32, s32, %d' % (WS_G + 3 * 2304))
    a('v_lshlrev_b32 v6, 4, v2')
    a('buffer_load_dwordx4 v[52:55], v6, s[24:27], s32 offen')
    a('s_waitcnt vmcnt(10)')
    a('v_and_b32 v7, 0x7ff, v5')
    a('v_sub_u32 v7, 2047, v7')
    a('v_mul_u32_u24 v7, 1152, v7')
    a('v_lshl_add_u32 v7, v2, 3, v7')
    a('s_lshl_b32 s33, s29, 6')
    a('s_add_u32 s34, s33, %d' % WS_X2)
    a('s_add_u32 s35, s33, %d' % WS_H2)
    a('buffer_load_dwordx2 v[56:57], v7, s[24:27], s34 offen')
    a('buffer_load_dwordx2 v[58:59], v7, s[24:27], s35 offen')
    a('v_and_b32 v8, 0xffff0000, v5')
    a('v_ashrrev_i32 v9, 31, v8')
    a('v_not_b32 v9, v9')
    a('v_or_b32 v9, 0x80000000, v9')
    a('v_xor_b32 v8, v8, v9')
    a('v_and_b32 v8, 0xffff0000, v8')
    a('v_mul_f32 v8, %s, v8' % f32(-LOG2E))
    a('v_exp_f32 v8, v8')
    a('s_nop 0')
    a('v_add_f32 v8, 1.0, v8')
    a('v_rcp_f32 v8, v8')
    a('s_nop 0')
    rnd(a, 8)
    a('s_waitcnt vmcnt(3)')
    for i in range(1, 9):
        for j in range(4):
            a('v_add_f32 v%d, v%d, v%d' % (16 + j, 16 + j, 16 + 4 * i + j))
    a('s_nop 1')
    for j in range(4):
        a('v_add_f32_dpp v%d, v%d, v%d row_ror:8 row_mask:0xf bank_mask:0xf' % (16 + j, 16 + j, 16 + j))
    a('v_lshrrev_b32 v10, 4, v0')
    a('v_lshlrev_b32 v10, 7, v10')
    a('v_add_u32 v10, v10, v6')
    a('ds_write_b128 v10, v[16:19]')
    a('s_waitcnt lgkmcnt(0)')
    a('s_barrier')
    a('v_cmp_gt_u32 vcc, 8, v0')
    a('s_and_saveexec_b64 s[38:39], vcc')
    a('s_cbranch_execz K5_END')
    for i in range(8):
        a('ds_read_b128 %s, v6 offset:%d' % (vr(16 + 4 * i, 4), i * 128))
    a('s_waitcnt lgkmcnt(0)')
    for i in range(1, 8):
        for j in range(4):
            a('v_add_f32 v%d, v%d, v%d' % (16 + j, 16 + j, 16 + 4 * i + j))
    for i in range(8):
        a('ds_read_b128 %s, v6 offset:%d' % (vr(20 + 4 * i, 4), 1024 + i * 128))
    a('s_waitcnt lgkmcnt(0)')
    for i in range(8):
        for j in range(4):
            a('v_add_f32 v%d, v%d, v%d' % (16 + j, 16 + j, 20 + 4 * i + j))
    rnd2(a, 16, 17, 60)
    rnd2(a, 18, 19, 60)
    for j in range(4):
        a('v_mul_f32 v%d, v%d, v8' % (16 + j, 16 + j))
    rnd2(a, 16, 17, 60)
    rnd2(a, 18, 19, 60)
    a('s_waitcnt vmcnt(0)')
    unpack(a, 20, 21, 58)
    unpack(a, 22, 23, 59)
    for j in range(4):
        a('v_add_f32 v%d, v%d, v%d' % (16 + j, 16 + j, 20 + j))
    rnd2(a, 16, 17, 60)
    rnd2(a, 18, 19, 60)
    for j in range(4):
        a('v_mul_f32 v%d, v%d, v%d' % (16 + j, 16 + j, 52 + j))
    rnd2(a, 16, 17, 60)
    rnd2(a, 18, 19, 60)
    unpack(a, 20, 21, 56)
    unpack(a, 22, 23, 57)
    for j in range(4):
        a('v_add_f32 v%d, v%d, v%d' % (16 + j, 16 + j, 20 + j))
    a('v_cvt_pk_bf16_f32 v20, v16, v17')
    a('v_cvt_pk_bf16_f32 v21, v18, v19')
    a('buffer_store_dwordx2 v[20:21], v7, s[20:23], s33 offen')
    a('K5_END:')
    a('s_endpgm')
    return a, descriptor('fin_kernel', 64, 48, 64), ('fin_kernel', 144, 256, 2048)


def build(stamps=False):
    ks = [gen_k1(), gen_k2(stamps), gen_k3(), gen_k4(), gen_k5()]
    probs = []
    for a, d, l in ks:
        probs += check_hazards(getattr(a, 'trace', a.lines), l[0])
    out = []
    for a, d, (n, g, b, lds) in ks:
        out.append('; @launch kernel=%s grid=(%d,1,1) block=(%d,1,1) lds=%d' % (n, g, b, lds))
    out.append('.amdgcn_target "amdgcn-amd-amdhsa--gfx950"')
    out.append('.text')
    for a, d, l in ks:
        out.append(a.text())
    out.append('.section .rodata,"a"')
    for a, d, l in ks:
        out.append(d)
    return '\n'.join(out), probs


if __name__ == '__main__':
    stamps = '--stamps' in sys.argv
    outp = [x for x in sys.argv[1:] if not x.startswith('--')]
    txt, probs = build(stamps)
    for p in probs:
        print('HAZARD', p)
    open(outp[0] if outp else 'cdna_kernels/%s.s' % NAME, 'w').write(txt)
    print('wrote', len(txt), 'bytes;', len(probs), 'hazards')
```
